```python
import torch

def _softmax(x, axis=-1):
    return torch.softmax(x, dim=axis)
def _gelu(x):
    return torch.nn.functional.gelu(x, approximate="tanh")
def _silu(x):
    return torch.nn.functional.silu(x)
def _sigmoid(x):
    return torch.sigmoid(x)
def _layernorm(x, axis=-1, eps=1e-5):
    m = x.mean(dim=axis, keepdim=True)
    v = x.var(dim=axis, keepdim=True, unbiased=False)
    return (x - m) / torch.sqrt(v + eps)
def _scatter_add(tgt, idx, src, axis=0):
    return tgt.clone().index_add_(axis, idx, src)
def _segment_sum(src, seg, n):
    out = torch.zeros((n,) + src.shape[1:], dtype=src.dtype)
    return out.index_add_(0, seg, src)
def _pad(x, pw):
    flat = tuple(v for pair in reversed(pw) for v in pair)
    return torch.nn.functional.pad(x, flat)

kernel_name = 'gated_mix__sliding_block_cached__glu_gated_reglu__decode'

def setup_inputs():

    _w = (lambda a: (lambda t: t.to(torch.bfloat16) if t.is_floating_point() else t)(torch.as_tensor(a)))
    def _A_setup():
        B, Sq, D = 2, 1, 512
        Hq, Hkv, Sk, Dh = 32, 32, 4096, 128
        assert Hq % Hkv == 0, (Hq, Hkv)
        return {
            "x": _w((lambda *s: torch.randn(*s, dtype=torch.bfloat16) * 0.05)(B, Sq, D)),
            "k_cache": _w((lambda *s: torch.randn(*s, dtype=torch.bfloat16) * 3.2)(B, Hkv, Sk, Dh)),
            "v_cache": _w((lambda *s: torch.randn(*s, dtype=torch.bfloat16) * 0.05)(B, Hkv, Sk, Dh)),
            "wq": _w((lambda *s: torch.randn(*s, dtype=torch.bfloat16) * 3.2)(D, Hq * Dh) * (D ** -0.5)),
            "wo": _w((lambda *s: torch.randn(*s, dtype=torch.bfloat16) * 0.05)(Hq * Dh, D) * ((Hq * Dh) ** -0.5)),
        }
    _A_in = _A_setup()

    def _B_setup():
        B, S, D, F = 2, 1, 512, 1376
        return {
            "x": _w((lambda *s: torch.randn(*s, dtype=torch.bfloat16) * 0.05)(B, S, D)),
            "W_gate": _w((lambda *s: torch.randn(*s, dtype=torch.bfloat16) * 0.2)(D, F) * (2.0 / D) ** 0.5),
            "W_up": _w((lambda *s: torch.randn(*s, dtype=torch.bfloat16) * 0.2)(D, F) * (2.0 / D) ** 0.5),
            "W_down": _w((lambda *s: torch.randn(*s, dtype=torch.bfloat16) * 0.2)(F, D) * (1.0 / F) ** 0.5),
        }
    _B_in = _B_setup()

    return {
        "A_x": _A_in["x"],
        "A_k_cache": _A_in["k_cache"],
        "A_v_cache": _A_in["v_cache"],
        "A_wq": _A_in["wq"],
        "A_wo": _A_in["wo"],
        "B_x": _B_in["x"],
        "B_W_gate": _B_in["W_gate"],
        "B_W_up": _B_in["W_up"],
        "B_W_down": _B_in["W_down"],
        "gate_w": _w((lambda *s: torch.randn(*s, dtype=torch.bfloat16) * 0.05)(512) * 16.0),
    }

def reference(A_x, A_k_cache, A_v_cache, A_wq, A_wo, B_x, B_W_gate, B_W_up, B_W_down, gate_w):
    def _A_ref(x, k_cache, v_cache, wq, wo):
        B, Sq, D = x.shape
        Hq, Dh = 32, 128
        Hkv, Sk = k_cache.shape[1], k_cache.shape[2]
        W = min(4096, max(256, Sk // 4))
        rep = Hq // Hkv
        q = (lambda x, *d: x.permute(*d))((x @ wq).reshape(B, Sq, Hq, Dh), 0, 2, 1, 3)
        k = (lambda x, n, axis: torch.repeat_interleave(x, n, dim=axis))(k_cache[:, :, Sk - W:, :], rep, axis=1)
        v = (lambda x, n, axis: torch.repeat_interleave(x, n, dim=axis))(v_cache[:, :, Sk - W:, :], rep, axis=1)
        scores = torch.einsum("bhqd,bhkd->bhqk", q, k) * (Dh ** -0.5)
        p = _softmax(scores, axis=-1)
        o = torch.einsum("bhqk,bhkd->bhqd", p, v)
        return (lambda x, *d: x.permute(*d))(o, 0, 2, 1, 3).reshape(B, Sq, Hq * Dh) @ wo

    def _B_ref(x, W_gate, W_up, W_down):
        gate = torch.einsum("bsd,df->bsf", x, W_gate)
        up = torch.einsum("bsd,df->bsf", x, W_up)
        gate = gate * (lambda x, dt: x.to(dt))(gate > 0, gate.dtype)
        h = gate * up
        return torch.einsum("bsf,fd->bsd", h, W_down)

    x = A_x
    g = _sigmoid((x * gate_w).sum(-1, keepdims=True))
    a = _A_ref(x, A_k_cache, A_v_cache, A_wq, A_wo)
    b = _B_ref(x, B_W_gate, B_W_up, B_W_down)
    return g * a + (1 - g) * b
```

```python
from gen_stream import HEAD, TAIL, KN

def stamp_store(a, nst, regs):
    a("    s_cmp_lg_u32 s20, 0")
    a("    s_cbranch_scc1 L_done")
    a("    s_waitcnt lgkmcnt(0)")
    a(f"    s_mul_i32 s24, s2, {nst*8}")
    a("    s_add_u32 s18, s18, s24")
    a("    s_addc_u32 s19, s19, 0")
    a("    s_add_u32 s18, s18, 0x8000000")
    a("    s_addc_u32 s19, s19, 0")
    a("    v_mov_b32 v4, 0")
    for i, rg in enumerate(regs):
        a(f"    v_mov_b32 v0, s{rg}")
        a(f"    v_mov_b32 v1, s{rg+1}")
        a(f"    global_store_dwordx2 v4, v[0:1], s[18:19] offset:{i*8}")
        a("    s_nop 1")

def gen_ifetch(nbytes=8192, waves=8, wide=True):
    o = []; a = o.append
    a("    s_memrealtime s[40:41]")
    a("    s_cmp_ge_u32 s2, 256")
    a("    s_cbranch_scc1 L_done")
    a("    s_load_dwordx2 s[18:19], s[0:1], 96  ; ws")
    a("    v_lshrrev_b32 v1, 6, v0")
    a("    s_nop 0")
    a("    v_readfirstlane_b32 s20, v1   ; wave")
    a("    s_waitcnt lgkmcnt(0)")
    a("    s_memrealtime s[42:43]")
    a("    s_mov_b32 s30, 0")
    a("L_loop:")
    n = nbytes // (8 if wide else 4)
    for i in range(n):
        if wide: a(f"    v_add3_u32 v{8+(i%8)}, v{16+(i%8)}, v{16+(i%8)}, v{16+(i%8)}")
        else: a(f"    v_mov_b32 v{8+(i%8)}, v{16+(i%8)}")
    a("    s_cmp_eq_u32 s30, 0")
    a("    s_cbranch_scc0 L_second")
    a("    s_memrealtime s[44:45]")
    a("    s_waitcnt lgkmcnt(0)")
    a("    s_mov_b32 s30, 1")
    a("    s_branch L_loop")
    a("L_second:")
    a("    s_memrealtime s[46:47]")
    stamp_store(a, 4, [40, 42, 44, 46])
    a("L_done:")
    a("    s_endpgm")
    return HEAD.format(grid=256, block=waves*64, lds=90000, kn=KN) + "\n".join(o) + TAIL.format(kn=KN, vgpr=64, acc=64)

def gen_stream2(nt="nt", waves=8, wgs=256, lds=90000, vgpr=256, dma=False, touch=False):
    o = []; a = o.append
    tw = wgs * waves
    per_cu_waves = tw // 256
    a("    s_memrealtime s[40:41]")
    a(f"    s_cmp_ge_u32 s2, {wgs}")
    a("    s_cbranch_scc1 L_done")
    a("    s_load_dwordx4 s[4:7], s[0:1], 8     ; K, V")
    a("    s_load_dwordx4 s[8:11], s[0:1], 24")
    a("    s_load_dwordx4 s[12:15], s[0:1], 48")
    a("    s_load_dwordx2 s[16:17], s[0:1], 64  ; Wd")
    a("    s_load_dwordx2 s[18:19], s[0:1], 96  ; ws")
    a("    v_lshrrev_b32 v1, 6, v0")
    a("    v_and_b32 v2, 63, v0")
    a("    s_nop 0")
    a("    v_readfirstlane_b32 s20, v1")
    wg_per_slice = wgs // 256
    if wg_per_slice <= 1:
        a("    s_mov_b32 s22, s2     ; slice")
        a("    s_mov_b32 s21, s20")
    else:
        a("    s_and_b32 s22, s2, 255   ; slice")
        a(f"    s_lshr_b32 s21, s2, 8")
        a(f"    s_mul_i32 s21, s21, {waves}")
        a("    s_add_u32 s21, s21, s20")
    a("    s_waitcnt lgkmcnt(0)")
    a("    s_memrealtime s[42:43]")
    W = per_cu_waves
    nkv = 64 // W
    a("    s_and_b32 s23, s22, 63")
    a("    s_lshl_b32 s23, s23, 20")
    a("    s_add_u32 s23, s23, 786432")
    a("    s_lshr_b32 s24, s22, 6")
    a("    s_lshl_b32 s24, s24, 16      ; s4*64KiB")
    a("    s_add_u32 s23, s23, s24")
    a(f"    s_mul_i32 s24, s21, {nkv*1024}")
    a("    s_add_u32 s23, s23, s24")
    a("    s_add_u32 s4, s4, s23")
    a("    s_addc_u32 s5, s5, 0")
    a("    s_add_u32 s6, s6, s23")
    a("    s_addc_u32 s7, s7, 0")
    nw = max(16 // W, 1)
    a("    s_lshl_b32 s24, s22, 14")
    a(f"    s_mul_i32 s25, s21, {nw*1024}")
    a("    s_add_u32 s24, s24, s25")
    a("    s_add_u32 s8, s8, s24")
    a("    s_addc_u32 s9, s9, 0")
    a("    s_add_u32 s10, s10, s24")
    a("    s_addc_u32 s11, s11, 0")
    nf = max(1, -(-6 // W)) if W < 6 else 1
    a("    s_mul_i32 s24, s22, 5504")
    a("    s_and_b32 s24, s24, 0xffffff80")
    a(f"    s_min_u32 s25, s21, {max(0, (5 if W>=6 else W-1))}")
    a(f"    s_mul_i32 s25, s25, {nf*1024}")
    a("    s_add_u32 s24, s24, s25")
    a(f"    s_min_u32 s24, s24, {1409024 - nf*1024}")
    for p in (12, 14, 16):
        a(f"    s_add_u32 s{p}, s{p}, s24")
        a(f"    s_addc_u32 s{p+1}, s{p+1}, 0")
    a("    v_lshlrev_b32 v5, 4, v2")
    seq = []
    for j in range(nw): seq.append((8, j*1024))
    for j in range(nf): seq.append((12, j*1024)); seq.append((14, j*1024))
    for j in range(nkv): seq.append((4, j*1024))
    for j in range(nkv): seq.append((6, j*1024))
    for j in range(nf): seq.append((16, j*1024))
    for j in range(nw): seq.append((10, j*1024))
    r = 8
    if touch:
        for base in (4, 6, 10, 16, 12, 14):
            a(f"    global_load_dword v7, v5, s[{base}:{base+1}] {nt}")
    nper = 160 // max(waves * (1 if wg_per_slice<=1 else wg_per_slice),1)
    if dma: a(f"    s_mul_i32 s26, s20, {(lds//waves)//1024*1024}")
    for idx, (base, off) in enumerate(seq):
        vo = 5
        if off >= 4096 or (dma and off > 0):
            a(f"    v_add_u32 v6, {off}, v5"); vo = 6; off = 0
        if dma:
            a(f"    s_add_u32 s27, s26, {(idx % ((lds//waves)//1024))*1024}")
            a("    s_mov_b32 m0, s27")
            a("    s_nop 0")
            a(f"    global_load_lds_dwordx4 v{vo}, s[{base}:{base+1}] offset:{off} {nt}")
        else:
            a(f"    global_load_dwordx4 v[{r}:{r+3}], v{vo}, s[{base}:{base+1}] offset:{off} {nt}")
            r += 4
    n = len(seq) + (6 if touch else 0)
    assert n <= 63 and r <= vgpr, (n, r)
    a("    s_memrealtime s[44:45]")
    a(f"    s_waitcnt vmcnt({n-1})")
    a("    s_memrealtime s[46:47]")
    a(f"    s_waitcnt vmcnt({n//2})")
    a("    s_memrealtime s[48:49]")
    a("    s_waitcnt vmcnt(0)")
    a("    s_barrier")
    a("    s_memrealtime s[50:51]")
    stamp_store(a, 6, [40, 42, 44, 46, 48, 50])
    a("L_done:")
    a("    s_endpgm")
    return HEAD.format(grid=wgs, block=waves*64, lds=lds, kn=KN) + "\n".join(o) + TAIL.format(kn=KN, vgpr=vgpr, acc=vgpr)

if __name__ == "__main__":
    V = {}
    for nm, pol in (("nt","nt"),("sc1nt","sc1 nt"),("sc0sc1nt","sc0 sc1 nt"),("sc0nt","sc0 nt"),("sc1","sc1"),("sc0sc1","sc0 sc1")):
        V[f"p_{nm}"] = gen_stream2(nt=pol)
    V["w4"] = gen_stream2(waves=4)
    V["w4dma"] = gen_stream2(waves=4, dma=True, lds=163840)
    V["w8dma"] = gen_stream2(waves=8, dma=True, lds=163840)
    V["w16"] = gen_stream2(waves=16, vgpr=128)
    V["w8touch"] = gen_stream2(waves=8, touch=True)
    V["w4touch"] = gen_stream2(waves=4, touch=True)
    for n, s in V.items(): open(f"m_{n}.s", "w").write(s)
    I = {"i2k": gen_ifetch(2048), "i8k": gen_ifetch(8192), "i32k": gen_ifetch(32768), "i8k_w1": gen_ifetch(8192, waves=1), "i8k_narrow": gen_ifetch(8192, wide=False)}
    for n, s in I.items(): open(f"m_{n}.s", "w").write(s)
    print(" ".join(f"m_{n}.s" for n in V)); print(" ".join(f"m_{n}.s" for n in I))
```

```python
import sys
KN = "gated_mix__sliding_block_cached__glu_gated_reglu__decode_kernel"
HEAD = """; @launch grid=({grid},1,1) block=({block},1,1) lds={lds}
.amdgcn_target "amdgcn-amd-amdhsa--gfx950"
.text
.globl {kn}
.p2align 8
.type {kn},@function
{kn}:
"""
TAIL = """
.section .rodata,"a"
.p2align 6
.amdhsa_kernel {kn}
  .amdhsa_next_free_vgpr {vgpr}
  .amdhsa_next_free_sgpr 96
  .amdhsa_accum_offset {acc}
  .amdhsa_group_segment_fixed_size 0
  .amdhsa_kernarg_size 104
  .amdhsa_user_sgpr_count 2
  .amdhsa_user_sgpr_kernarg_segment_ptr 1
  .amdhsa_system_sgpr_workgroup_id_x 1
.end_amdhsa_kernel
"""
def gen(pattern="row", nt="", waves=8, weights=True, lds=90000, kv=True, vgpr=256, empty=False, order="wkv", dma=False):
    o = []
    a = o.append
    a("    s_memrealtime s[40:41]")
    a("    s_cmp_ge_u32 s2, 256")
    a("    s_cbranch_scc1 L_done")
    a("    s_load_dwordx4 s[4:7], s[0:1], 8     ; K, V")
    a("    s_load_dwordx4 s[8:11], s[0:1], 24")
    a("    s_load_dwordx4 s[12:15], s[0:1], 48")
    a("    s_load_dwordx2 s[16:17], s[0:1], 64  ; Wd")
    a("    s_load_dwordx2 s[18:19], s[0:1], 96  ; ws")
    a("    v_lshrrev_b32 v1, 6, v0")
    a("    v_and_b32 v2, 63, v0")
    a("    s_nop 0")
    a("    v_readfirstlane_b32 s20, v1   ; wave")
    a("    s_and_b32 s21, s2, 63   ; bh")
    a("    s_lshr_b32 s22, s2, 6   ; s4")
    a("    s_waitcnt lgkmcnt(0)")
    nload_kv = 64 // waves
    r = 8
    loads = {"w": [], "k": [], "v": []}
    if not empty:
        a("    s_lshl_b32 s23, s21, 20")
        a("    s_add_u32 s23, s23, 786432")
        if pattern == "row":
            a("    s_lshl_b32 s24, s22, 16      ; s4*64KiB")
            a("    s_add_u32 s23, s23, s24")
            a(f"    s_mul_i32 s24, s20, {nload_kv*1024}")
            a("    s_add_u32 s23, s23, s24")
            a("    v_lshlrev_b32 v3, 4, v2")
            step = 1024
        elif pattern == "seg64":
            a("    s_lshl_b32 s24, s22, 6      ; s4*64B")
            a("    s_add_u32 s23, s23, s24")
            a(f"    s_mul_i32 s24, s20, {nload_kv*4096}")
            a("    s_add_u32 s23, s23, s24")
            a("    v_lshrrev_b32 v3, 2, v2")
            a("    v_lshlrev_b32 v3, 8, v3")
            a("    v_and_b32 v4, 3, v2")
            a("    v_lshl_add_u32 v3, v4, 4, v3")
            step = 4096
        elif pattern == "seg128":
            a("    s_and_b32 s24, s22, 1")
            a("    s_lshl_b32 s24, s24, 7      ; dimhalf*128B")
            a("    s_add_u32 s23, s23, s24")
            a("    s_lshr_b32 s24, s22, 1")
            a("    s_lshl_b32 s24, s24, 17      ; keyhalf*512*256")
            a("    s_add_u32 s23, s23, s24")
            a(f"    s_mul_i32 s24, s20, {nload_kv*2048}")
            a("    s_add_u32 s23, s23, s24")
            a("    v_lshrrev_b32 v3, 3, v2")
            a("    v_lshlrev_b32 v3, 8, v3")
            a("    v_and_b32 v4, 7, v2")
            a("    v_lshl_add_u32 v3, v4, 4, v3")
            step = 2048
        a("    s_add_u32 s4, s4, s23")
        a("    s_addc_u32 s5, s5, 0")
        a("    s_add_u32 s6, s6, s23")
        a("    s_addc_u32 s7, s7, 0")
        nw = 16 // waves if waves <= 16 else 1
        a(f"    s_lshl_b32 s24, s2, 14")
        a(f"    s_mul_i32 s25, s20, {nw*1024}")
        a("    s_add_u32 s24, s24, s25")
        a("    s_add_u32 s8, s8, s24")
        a("    s_addc_u32 s9, s9, 0")
        a("    s_add_u32 s10, s10, s24")
        a("    s_addc_u32 s11, s11, 0")
        a("    s_mul_i32 s24, s2, 5504")
        a("    s_and_b32 s24, s24, 0xffffff80")
        a("    s_min_u32 s25, s20, 4")
        a("    s_lshl_b32 s25, s25, 10")
        a("    s_add_u32 s24, s24, s25")
        a("    s_min_u32 s24, s24, 1408000")
        for p in (12, 14, 16):
            a(f"    s_add_u32 s{p}, s{p}, s24")
            a(f"    s_addc_u32 s{p+1}, s{p+1}, 0")
        a("    v_lshlrev_b32 v5, 4, v2")
        def ld(base, voff, off, lst):
            lst.append((base, voff, off))
        if weights:
            for j in range(nw): ld(8, 5, j*1024, loads["w"])
            ld(12, 5, 0, loads["w"]); ld(14, 5, 0, loads["w"])
        if kv:
            for j in range(nload_kv): ld(4, 3, j*step, loads["k"])
            for j in range(nload_kv): ld(6, 3, j*step, loads["v"])
        tailw = []
        if weights:
            ld(16, 5, 0, tailw)
            for j in range(nw): ld(10, 5, j*1024, tailw)
        seq = loads["w"] + loads["k"] + loads["v"] + tailw
        if dma:
            per = len(seq)
            a(f"    s_mul_i32 s26, s20, {(160//waves)*1024}")
        for idx, (base, voff, off) in enumerate(seq):
            vo = voff
            if off >= 4096 or (dma and off > 0):
                a(f"    v_add_u32 v6, {off}, v{voff}")
                vo = 6; off = 0
            if dma:
                a(f"    s_add_u32 s27, s26, {(idx % (160//waves))*1024}")
                a("    s_mov_b32 m0, s27")
                a("    s_nop 0")
                a(f"    global_load_lds_dwordx4 v{vo}, s[{base}:{base+1}] offset:{off} {nt}")
            else:
                a(f"    global_load_dwordx4 v[{r}:{r+3}], v{vo}, s[{base}:{base+1}] offset:{off} {nt}")
                r += 4
        a("    s_waitcnt vmcnt(0)")
        a("    s_barrier")
    a("    s_memrealtime s[42:43]")
    a("    s_cmp_lg_u32 s20, 0")
    a("    s_cbranch_scc1 L_done")
    a("    s_waitcnt lgkmcnt(0)")
    a("    s_lshl_b32 s24, s2, 4")
    a("    s_add_u32 s18, s18, s24")
    a("    s_addc_u32 s19, s19, 0")
    a("    s_add_u32 s18, s18, 0x8000000")
    a("    s_addc_u32 s19, s19, 0")
    a("    v_mov_b32 v0, s40")
    a("    v_mov_b32 v1, s41")
    a("    v_mov_b32 v2, s42")
    a("    v_mov_b32 v3, s43")
    a("    v_mov_b32 v4, 0")
    a("    v_cmp_eq_u32 vcc, 0, v4")
    a("    global_store_dwordx4 v4, v[0:3], s[18:19]")
    a("L_done:")
    a("    s_endpgm")
    block = waves * 64
    return HEAD.format(grid=256, block=block, lds=lds, kn=KN) + "\n".join(o) + TAIL.format(kn=KN, vgpr=vgpr, acc=vgpr)

if __name__ == "__main__":
    V = {
      "empty": dict(empty=True),
      "row8": dict(pattern="row"),
      "row8nt": dict(pattern="row", nt="nt"),
      "seg64_8": dict(pattern="seg64"),
      "seg64_8nt": dict(pattern="seg64", nt="nt"),
      "seg128_8": dict(pattern="seg128"),
      "seg128_8nt": dict(pattern="seg128", nt="nt"),
      "row16": dict(pattern="row", waves=16, vgpr=128),
      "row16nt": dict(pattern="row", waves=16, vgpr=128, nt="nt"),
      "row4": dict(pattern="row", waves=4),
      "row8dma": dict(pattern="row", dma=True, lds=163840),
      "row8dmant": dict(pattern="row", dma=True, lds=163840, nt="nt"),
    }
    for n, kw in V.items():
        open(f"s_{n}.s", "w").write(gen(**kw))
    print("\n".join(f"s_{n}.s" for n in V))
```

```python
from gen_stream import HEAD, TAIL, KN
from gen_misc import stamp_store

def gen(share=1, probe="sc", n=16, stream=True, window=4, nk=11, nv=11, sleep=0, nprobe_waves=1):
    o = []; a = o.append
    a("    s_memrealtime s[40:41]")
    a("    s_cmp_ge_u32 s2, 256")
    a("    s_cbranch_scc1 L_done")
    a("    s_load_dwordx4 s[4:7], s[0:1], 8     ; K, V")
    a("    s_load_dwordx2 s[18:19], s[0:1], 96  ; ws")
    a("    v_lshrrev_b32 v1, 6, v0")
    a("    v_and_b32 v2, 63, v0")
    a("    s_nop 0")
    a("    v_readfirstlane_b32 s20, v1")
    a("    s_waitcnt lgkmcnt(0)")
    a("    s_cmp_ge_u32 s20, 8")
    a("    s_cbranch_scc1 L_probe")
    if stream:
        a("    s_and_b32 s23, s2, 63")
        a("    s_lshl_b32 s23, s23, 20")
        a("    s_lshr_b32 s24, s2, 6")
        a("    s_lshl_b32 s24, s24, 18")
        a("    s_add_u32 s23, s23, s24")
        a(f"    s_mul_i32 s24, s20, {max(nk,nv)*1024}")
        a("    s_add_u32 s23, s23, s24")
        a("    s_add_u32 s4, s4, s23")
        a("    s_addc_u32 s5, s5, 0")
        a("    s_add_u32 s6, s6, s23")
        a("    s_addc_u32 s7, s7, 0")
        a("    v_lshlrev_b32 v5, 4, v2")
        seq = [(4, j*1024) for j in range(nk)] + [(6, j*1024) for j in range(nv)]
        r = 8
        for idx, (base, off) in enumerate(seq):
            vo = 5
            if off >= 4096:
                a(f"    v_add_u32 v6, {off}, v5"); vo = 6; off = 0
            if window and idx >= window: a(f"    s_waitcnt vmcnt({window-1})")
            a(f"    global_load_dwordx4 v[{r}:{r+3}], v{vo}, s[{base}:{base+1}] offset:{off} nt")
            r += 4
        a("    s_waitcnt vmcnt(0)")
    a("    s_memrealtime s[46:47]")
    a("    s_cmp_lg_u32 s20, 0")
    a("    s_cbranch_scc1 L_sk")
    a("    s_waitcnt lgkmcnt(0)")
    a("    v_mov_b32 v10, 0")
    a("    v_mov_b32 v11, s46")
    a("    ds_write_b32 v10, v11")
    a("    s_waitcnt lgkmcnt(0)")
    a("L_sk:")
    a("    s_barrier")
    a("    s_endpgm")
    a("L_probe:")
    a("    s_setprio 3")
    a(f"    s_lshr_b32 s24, s2, {share.bit_length()-1}")
    a("    s_lshl_b32 s24, s24, 7")
    a("    s_add_u32 s8, s18, s24")
    a("    s_addc_u32 s9, s19, 0")
    a("    v_and_b32 v5, 7, v2")
    a("    v_lshlrev_b32 v5, 4, v5")
    a("    s_memrealtime s[42:43]")
    a(f"    s_mov_b32 s30, {n}")
    a("L_pl:")
    if probe == "sc":
        a("    s_load_dwordx8 s[68:75], s[8:9], 0 glc")
        a("    s_waitcnt lgkmcnt(0)")
    else:
        a("    global_load_dwordx4 v[8:11], v5, s[8:9] sc1")
        a("    s_waitcnt vmcnt(0)")
    if sleep: a(f"    s_sleep {sleep}")
    a("    s_sub_u32 s30, s30, 1")
    a("    s_cmp_lg_u32 s30, 0")
    a("    s_cbranch_scc1 L_pl")
    a("    s_memrealtime s[44:45]")
    a("    s_waitcnt lgkmcnt(0)")
    a("    s_barrier")
    a("    v_mov_b32 v10, 0")
    a("    ds_read_b32 v11, v10")
    a("    s_waitcnt lgkmcnt(0)")
    a("    v_readfirstlane_b32 s46, v11")
    a("    s_mov_b32 s47, s41")
    a("    s_cmp_eq_u32 s20, 8")
    a("    s_cselect_b32 s20, 0, 1")
    stamp_store(a, 4, [40, 42, 44, 46])
    a("L_done:")
    a("    s_endpgm")
    return HEAD.format(grid=256, block=(8+nprobe_waves)*64, lds=90000, kn=KN) + "\n".join(o) + TAIL.format(kn=KN, vgpr=128, acc=128)

if __name__ == "__main__":
    V = {}
    for pr in ("sc", "vec"):
        for sh in (1, 8, 32, 256):
            V[f"{pr}_sh{sh}_idle"] = gen(sh, pr, stream=False)
            V[f"{pr}_sh{sh}_strm"] = gen(sh, pr, stream=True, n=12 if pr == "sc" else 6)
    for n, s in V.items(): open(f"h_{n}.s", "w").write(s)
    print(" ".join(f"h_{n}.s" for n in V))
```

```python
from gen_stream import HEAD, TAIL, KN
from gen_misc import stamp_store
def gen(inter=False, rot="0", window=4, xmap="j"):
    o = []; a = o.append
    a(f"""
    s_memrealtime s[40:41]
    s_cmp_ge_u32 s2, 256
    s_cbranch_scc1 L_done
    s_load_dwordx4 s[4:7], s[0:1], 8
    s_load_dwordx2 s[18:19], s[0:1], 96
    v_lshrrev_b32 v1, 6, v0
    v_and_b32 v2, 63, v0
    s_and_b32 s30, s2, 7
    v_readfirstlane_b32 s20, v1
    s_lshr_b32 s31, s2, 3
    s_lshr_b32 s33, s31, 3
    s_lshl_b32 s34, s30, 2
    s_add_u32 s33, s33, s34             ; h
    s_lshr_b32 s35, s31, 2
    s_and_b32 s35, s35, 1
    s_lshl_b32 s35, s35, 5
    s_add_u32 s35, s35, s33
    s_lshl_b32 s35, s35, 20
    s_and_b32 s36, s31, 3
    s_lshl_b32 s36, s36, 16
    s_add_u32 s35, s35, s36
    s_add_u32 s35, s35, 786432
    s_lshl_b32 s36, s20, {10 if inter else 13}
    s_add_u32 s35, s35, s36""")
    R = {"0": "s_mov_b32 s37, 0", "g": "s_mov_b32 s37, s2", "j": "s_mov_b32 s37, s31", "h": "s_mov_b32 s37, s33",
         "gw": "s_add_u32 s37, s2, s20", "mix": "s_mul_i32 s37, s2, 5\n    s_lshr_b32 s38, s2, 3\n    s_add_u32 s37, s37, s38\n    s_add_u32 s37, s37, s20"}[rot]
    a("    " + R)
    a("    v_lshlrev_b32 v5, 4, v2")
    for j in range(8):
        a(f"    s_add_u32 s38, s37, {j}")
        a("    s_and_b32 s38, s38, 7")
        a(f"    s_lshl_b32 s38, s38, {13 if inter else 10}")
        a(f"    v_add_u32 v{8+j}, s38, v5")
    a("""
    s_waitcnt lgkmcnt(0)
    s_add_u32 s4, s4, s35
    s_addc_u32 s5, s5, 0
    s_add_u32 s6, s6, s35
    s_addc_u32 s7, s7, 0""")
    r = 16
    for idx in range(16):
        if window and idx >= window: a(f"    s_waitcnt vmcnt({window-1})")
        base = 4 if idx < 8 else 6
        a(f"    global_load_dwordx4 v[{r}:{r+3}], v{8 + idx % 8}, s[{base}:{base+1}] nt")
        r += 4
    a("""
    s_waitcnt vmcnt(0)
    s_barrier
    s_memrealtime s[42:43]""")
    stamp_store(a, 2, [40, 42])
    a("L_done:\n    s_endpgm")
    return HEAD.format(grid=256, block=512, lds=90000, kn=KN) + "\n".join(o) + TAIL.format(kn=KN, vgpr=128, acc=128)
if __name__ == "__main__":
    V = {"p0": gen(), "p1": gen(inter=True), "p0g": gen(rot="g"), "p1g": gen(inter=True, rot="g"), "p0j": gen(rot="j"), "p0gw": gen(rot="gw"),
         "p1gw": gen(inter=True, rot="gw"), "p0mix": gen(rot="mix"), "p1mix": gen(inter=True, rot="mix"), "p1j": gen(inter=True, rot="j")}
    for n, s in V.items(): open(f"pt_{n}.s", "w").write(s)
    print(" ".join(f"pt_{n}.s" for n in V))
```

```python
from gen_stream import HEAD, TAIL, KN
from gen_misc import stamp_store
def gen(inter=False, rot="0", window=4, xmap="j", contig=0):
    o = []; a = o.append
    a(f"""
    s_memrealtime s[40:41]
    s_cmp_ge_u32 s2, 256
    s_cbranch_scc1 L_done
    s_load_dwordx4 s[4:7], s[0:1], 8
    s_load_dwordx2 s[18:19], s[0:1], 96
    v_lshrrev_b32 v1, 6, v0
    v_and_b32 v2, 63, v0
    s_and_b32 s30, s2, 7
    v_readfirstlane_b32 s20, v1
    s_lshr_b32 s31, s2, 3
    s_lshr_b32 s33, s31, 3
    s_lshl_b32 s34, s30, 2
    s_add_u32 s33, s33, s34             ; h
    s_lshr_b32 s35, s31, 2
    s_and_b32 s35, s35, 1
    s_lshl_b32 s35, s35, 5
    s_add_u32 s35, s35, s33
    s_lshl_b32 s35, s35, 20
    s_and_b32 s36, s31, 3
    s_lshl_b32 s36, s36, 16
    s_add_u32 s35, s35, s36
    s_add_u32 s35, s35, 786432
    {"s_lshl_b32 s35, s2, 16" if contig == 1 else ""}
    {"s_lshl_b32 s35, s33, 5" if contig == 2 else ""}
    {"s_add_u32 s35, s35, s31" if contig == 2 else ""}
    {"s_and_b32 s35, s35, 255" if contig == 2 else ""}
    {"s_lshl_b32 s35, s35, 16" if contig == 2 else ""}
    s_lshl_b32 s36, s20, {10 if inter else 13}
    s_add_u32 s35, s35, s36""")
    R = {"0": "s_mov_b32 s37, 0", "g": "s_mov_b32 s37, s2", "j": "s_mov_b32 s37, s31", "h": "s_mov_b32 s37, s33",
         "gw": "s_add_u32 s37, s2, s20", "mix": "s_mul_i32 s37, s2, 5\n    s_lshr_b32 s38, s2, 3\n    s_add_u32 s37, s37, s38\n    s_add_u32 s37, s37, s20"}[rot]
    a("    " + R)
    a("    v_lshlrev_b32 v5, 4, v2")
    for j in range(8):
        a(f"    s_add_u32 s38, s37, {j}")
        a("    s_and_b32 s38, s38, 7")
        a(f"    s_lshl_b32 s38, s38, {13 if inter else 10}")
        a(f"    v_add_u32 v{8+j}, s38, v5")
    a("""
    s_waitcnt lgkmcnt(0)
    s_add_u32 s4, s4, s35
    s_addc_u32 s5, s5, 0
    s_add_u32 s6, s6, s35
    s_addc_u32 s7, s7, 0""")
    r = 16
    for idx in range(16):
        if window and idx >= window: a(f"    s_waitcnt vmcnt({window-1})")
        base = 4 if idx < 8 else 6
        a(f"    global_load_dwordx4 v[{r}:{r+3}], v{8 + idx % 8}, s[{base}:{base+1}] nt")
        r += 4
    a("""
    s_waitcnt vmcnt(0)
    s_barrier
    s_memrealtime s[42:43]""")
    stamp_store(a, 2, [40, 42])
    a("L_done:\n    s_endpgm")
    return HEAD.format(grid=256, block=512, lds=90000, kn=KN) + "\n".join(o) + TAIL.format(kn=KN, vgpr=128, acc=128)
if __name__ == "__main__":
    V = {"c1": gen(contig=1), "c1w8": gen(contig=1, window=0), "p0w8": gen(window=0), "p0w3": gen(window=3), "p0": gen(), "p1": gen(inter=True), "p0g": gen(rot="g"), "p1g": gen(inter=True, rot="g"), "p0j": gen(rot="j"), "p0gw": gen(rot="gw"),
         "p1gw": gen(inter=True, rot="gw"), "p0mix": gen(rot="mix"), "p1mix": gen(inter=True, rot="mix"), "p1j": gen(inter=True, rot="j")}
    for n, s in V.items(): open(f"pt_{n}.s", "w").write(s)
    print(" ".join(f"pt_{n}.s" for n in V))
```
